```python
import torch

def _softmax(x, axis=-1):
    return torch.softmax(x, dim=axis)
def _gelu(x):
    return torch.nn.functional.gelu(x, approximate="tanh")
def _silu(x):
    return torch.nn.functional.silu(x)
def _sigmoid(x):
    return torch.sigmoid(x)
def _layernorm(x, axis=-1, eps=1e-5):
    m = x.mean(dim=axis, keepdim=True)
    v = x.var(dim=axis, keepdim=True, unbiased=False)
    return (x - m) / torch.sqrt(v + eps)
def _scatter_add(tgt, idx, src, axis=0):
    return tgt.clone().index_add_(axis, idx, src)
def _segment_sum(src, seg, n):
    out = torch.zeros((n,) + src.shape[1:], dtype=src.dtype)
    return out.index_add_(0, seg, src)
def _pad(x, pw):
    flat = tuple(v for pair in reversed(pw) for v in pair)
    return torch.nn.functional.pad(x, flat)

kernel_name = 'gated_mix__sliding_block__glu_gated_glu__prompt'

def setup_inputs():

    _w = (lambda a: (lambda t: t.to(torch.bfloat16) if t.is_floating_point() else t)(torch.as_tensor(a)))
    def _A_setup():
        B, S, D = 1, 2048, 448
        return {
            "x": _w((lambda *s: torch.randn(*s, dtype=torch.bfloat16) * 0.05)(B, S, D)),
            "wqkv": _w((lambda *s: torch.randn(*s, dtype=torch.bfloat16) * 1.6)(D, 3 * D)),
            "wo": _w((lambda *s: torch.randn(*s, dtype=torch.bfloat16) * 0.05)(D, D)),
        }
    _A_in = _A_setup()

    def _B_setup():
        B, S, D, F = 1, 2048, 448, 1792
        return {
            "x": _w((lambda *s: torch.randn(*s, dtype=torch.bfloat16) * 0.05)(B, S, D)),
            "w_gate": _w((lambda *s: torch.randn(*s, dtype=torch.bfloat16) * 3.2)(D, F)),
            "w_up": _w((lambda *s: torch.randn(*s, dtype=torch.bfloat16) * 0.2)(D, F)),
            "w_down": _w((lambda *s: torch.randn(*s, dtype=torch.bfloat16) * 0.2)(F, D)),
        }
    _B_in = _B_setup()

    return {
        "A_x": _A_in["x"],
        "A_wqkv": _A_in["wqkv"],
        "A_wo": _A_in["wo"],
        "B_x": _B_in["x"],
        "B_w_gate": _B_in["w_gate"],
        "B_w_up": _B_in["w_up"],
        "B_w_down": _B_in["w_down"],
        "gate_w": _w((lambda *s: torch.randn(*s, dtype=torch.bfloat16) * 0.05)(448) * 16.0),
    }

def reference(A_x, A_wqkv, A_wo, B_x, B_w_gate, B_w_up, B_w_down, gate_w):
    def _A_ref(x, wqkv, wo):
        B, S, D = x.shape
        H = 16; Dh = D // H; W = 256
        qkv = (lambda x, *d: x.permute(*d))((x @ wqkv).reshape(B, S, 3, H, Dh), 2, 0, 3, 1, 4)
        q, k, v = qkv[0], qkv[1], qkv[2]
        scores = torch.einsum("bhqd,bhkd->bhqk", q, k) * (Dh ** -0.5)
        idx = torch.arange(S)
        mask = (idx[:, None] - idx[None, :] >= 0) & (idx[:, None] - idx[None, :] < W)
        scores = torch.where(mask[None, None], scores, -1e9)
        p = _softmax(scores, axis=-1)
        o = torch.einsum("bhqk,bhkd->bhqd", p, v)
        return (lambda x, *d: x.permute(*d))(o, 0, 2, 1, 3).reshape(B, S, D) @ wo

    def _B_ref(x, w_gate, w_up, w_down):
        g = torch.einsum("bsd,df->bsf", x, w_gate)
        u = torch.einsum("bsd,df->bsf", x, w_up)
        h = _sigmoid(g) * u
        return torch.einsum("bsf,fd->bsd", h, w_down)

    x = A_x
    g = _sigmoid((x * gate_w).sum(-1, keepdims=True))
    a = _A_ref(x, A_wqkv, A_wo)
    b = _B_ref(x, B_w_gate, B_w_up, B_w_down)
    return g * a + (1 - g) * b
```

```python
import sys
s = open(sys.argv[1]).read()
A = "; @launch kernel=pa_kernel grid=(256,1,1) block=(256,1,1) lds=163840"
B = "; @launch kernel=pb_kernel grid=(256,1,1) block=(256,1,1) lds=49152"
C = "; @launch kernel=pc_kernel grid=(256,1,1) block=(256,1,1) lds=131072"
def kd(n, vg=32):
    return f'.p2align 6\n.amdhsa_kernel {n}\n  .amdhsa_next_free_vgpr {vg}\n  .amdhsa_next_free_sgpr 32\n  .amdhsa_accum_offset {vg}\n  .amdhsa_group_segment_fixed_size 0\n  .amdhsa_kernarg_size 88\n  .amdhsa_user_sgpr_count 2\n  .amdhsa_user_sgpr_kernarg_segment_ptr 1\n  .amdhsa_system_sgpr_workgroup_id_x 1\n.end_amdhsa_kernel\n'
def kh(n): return f'.globl {n}\n.p2align 8\n.type {n},@function\n{n}:\n'
SRD = """    s_load_dwordx2 s[4:5], s[0:1], 80
    s_waitcnt lgkmcnt(0)
    s_mov_b32 s8, s4
    s_and_b32 s9, s5, 0xffff
    s_mov_b32 s10, 0x2000000
    s_mov_b32 s11, 0x20000
    v_mov_b32 v1, 0x1800000
"""
mark = kh("mark_kernel") + "    s_memrealtime s[12:13]\n    s_cmp_lg_u32 s2, 0\n    s_cbranch_scc1 Lm_end\n" + SRD + "    v_mov_b32 v2, s12\n    buffer_store_dword v2, v1, s[8:11], 0 offen\nLm_end:\n    s_endpgm\n"
spin = kh("spin_kernel") + "    s_cmp_lg_u32 s2, 0\n    s_cbranch_scc1 Ls_end\n" + SRD + """    buffer_load_dword v2, v1, s[8:11], 0 offen
    s_waitcnt vmcnt(0)
    v_readfirstlane_b32 s14, v2
Ls_loop:
    s_memrealtime s[12:13]
    s_waitcnt lgkmcnt(0)
    s_sub_u32 s15, s12, s14
    s_cmp_lt_u32 s15, 10000
    s_cbranch_scc1 Ls_loop
Ls_end:
    s_endpgm
"""
cyc = kh("cyc_kernel") + "    s_mov_b32 s4, 0\nLc_loop:\n" + "".join("    v_mfma_f32_32x32x16_bf16 v[16:31], v[4:7], v[8:11], v[16:31]\n" for _ in range(16)) + "    s_add_u32 s4, s4, 1\n    s_cmp_lt_u32 s4, 94\n    s_cbranch_scc1 Lc_loop\n    s_endpgm\n"
def variant(launch_lines):
    lines = s.split("\n")
    head = [l for l in lines if not l.startswith("; @launch")]
    t = "\n".join([head[0]] + launch_lines + head[1:])
    used = [(n, c) for n, c in (("mark_kernel", mark), ("spin_kernel", spin), ("cyc_kernel", cyc)) if any(n in l for l in launch_lines)]
    t = t.replace('.section .rodata,"a"\n', "".join(c for n, c in used) + '.section .rodata,"a"\n' + "".join(kd(n) for n, c in used), 1)
    return t
M = "; @launch kernel=mark_kernel grid=(1,1,1) block=(64,1,1) lds=0"
S = "; @launch kernel=spin_kernel grid=(1,1,1) block=(64,1,1) lds=0"
Y = "; @launch kernel=cyc_kernel grid=(256,1,1) block=(256,1,1) lds=0"
open("out/p_M_ABC.s", "w").write(variant([M, A, B, C, S]))
open("out/p_A_M_BC.s", "w").write(variant([A, M, B, C, S]))
open("out/p_AB_M_C.s", "w").write(variant([A, B, M, C, S]))
open("out/p_ABC_M.s", "w").write(variant([A, B, C, M, S]))
open("out/p_ABC_Y.s", "w").write(variant([A, B, C, Y]))
open("out/p_Y_ABC.s", "w").write(variant([Y, A, B, C]))
```

```python
class Asm:
    def __init__(self):
        self.lines = []
        self.lab = 0
    def __call__(self, s=""):
        for l in s.split("\n"):
            l = l.strip()
            if l == "": continue
            if l.endswith(":") or l.startswith("."):
                self.lines.append(l)
            else:
                self.lines.append("    " + l)
    def label(self, base="L"):
        self.lab += 1
        return f"{base}_{self.lab}"
    def text(self): return "\n".join(self.lines) + "\n"

HEADER_COMMENT = """; Kernarg layout (88 bytes, ptrs only, base s[0:1]):
"""
def kernel_desc(name, vgpr=256, sgpr=102, accum=256):
    return f""".section .rodata,"a"
.p2align 6
.amdhsa_kernel {name}
  .amdhsa_next_free_vgpr {vgpr}
  .amdhsa_next_free_sgpr {sgpr}
  .amdhsa_accum_offset {accum}
  .amdhsa_group_segment_fixed_size 0
  .amdhsa_kernarg_size 88
  .amdhsa_user_sgpr_count 2
  .amdhsa_user_sgpr_kernarg_segment_ptr 1
  .amdhsa_system_sgpr_workgroup_id_x 1
.end_amdhsa_kernel
"""
def kernel_head(name):
    return f""".text
.globl {name}
.p2align 8
.type {name},@function
{name}:
"""
```

```python
import sys
from asmlib import *
def gen(mode, seg, rs, segstride, off0, nwaves, depth, rows=448, reps=8, flags="", xcdsplit=True, ngrp=16):
    name = "gated_mix__sliding_block__glu_gated_glu__prompt_kernel"
    a = Asm()
    cpr = seg // 16
    import math
    P = cpr // math.gcd(cpr, 64)
    R = P * 64 // cpr
    nper = rows // R
    assert rows % R == 0
    per_wave = nper // nwaves
    assert per_wave >= 1, (nper, nwaves)
    bytes_per_pass = per_wave * nwaves * P * 1024
    hdr = HEADER_COMMENT + f"; @launch grid=(256,1,1) block=({64*nwaves},1,1) lds=131072\n.amdgcn_target \"amdgcn-amd-amdhsa--gfx950\"\n"
    a(f"""
    s_cmp_ge_u32 s2, 256
    s_cbranch_scc1 L_end
    s_load_dwordx2 s[4:5], s[0:1], 80
    s_load_dwordx2 s[6:7], s[0:1], 64
    v_and_b32 v1, 63, v0
    v_lshrrev_b32 v2, 6, v0
    s_nop 0
    v_readfirstlane_b32 s20, v2
    s_waitcnt lgkmcnt(0)
    s_mov_b32 s8, s4
    s_and_b32 s9, s5, 0xffff
    s_mov_b32 s10, 0x10000000
    s_mov_b32 s11, 0x20000
    s_mov_b32 s12, s6
    s_and_b32 s13, s7, 0xffff
    s_mov_b32 s14, {2048*448*2}
    s_mov_b32 s15, 0x20000
    s_lshr_b32 s21, s2, 3
    s_and_b32 s21, s21, {ngrp-1}
    s_mul_i32 s21, s21, {segstride}
    s_add_u32 s21, s21, {off0}
    """)
    if xcdsplit:
        a(f"s_and_b32 s22, s2, 7\ns_mul_i32 s22, s22, {4*1024*1024}\ns_add_u32 s21, s21, s22")
    for p in range(P):
        a(f"v_add_u32 v3, {p*64}, v1")
        magic = (2**32 + cpr - 1)//cpr
        if cpr == 1:
            a("v_mov_b32 v4, v3")
        else:
            a(f"s_mov_b32 s23, {magic}\nv_mul_hi_u32 v4, v3, s23")
        a(f"s_mov_b32 s23, {cpr}\nv_mul_lo_u32 v5, v4, s23\nv_sub_u32 v5, v3, v5\nv_lshlrev_b32 v5, 4, v5")
        a(f"s_mov_b32 s23, {rs}\nv_mul_lo_u32 v4, v4, s23\nv_add_u32 v{10+p}, v4, v5\nv_add_u32 v{10+p}, s21, v{10+p}")
    a(f"s_mul_i32 s24, s20, {R*rs}")
    a(f"s_lshl_b32 s25, s20, 14")
    a("s_mov_b32 s30, 0")
    a("L_rep:")
    a("s_cmp_eq_u32 s30, 1\ns_cbranch_scc0 L_nostamp\ns_waitcnt vmcnt(0)\ns_barrier\ns_memtime s[32:33]\ns_waitcnt lgkmcnt(0)\nL_nostamp:")
    a(f"s_mov_b32 s26, s24\ns_mov_b32 s27, 0")
    a("L_per:")
    for p in range(P):
        if mode == "lds":
            a(f"s_add_u32 s28, s25, {(p%16)*1024}\ns_mov_b32 m0, s28\ns_nop 0")
            a(f"buffer_load_dwordx4 v{10+p}, s[8:11], s26 offen {flags} lds")
        else:
            d = 64 + 4*(p % 32)
            a(f"buffer_load_dwordx4 v[{d}:{d+3}], v{10+p}, s[8:11], s26 offen {flags}")
        a(f"s_waitcnt vmcnt({depth})")
    a(f"s_add_u32 s26, s26, {nwaves*R*rs}\ns_add_u32 s27, s27, 1\ns_cmp_lt_u32 s27, {per_wave}\ns_cbranch_scc1 L_per")
    a(f"s_add_u32 s30, s30, 1\ns_cmp_lt_u32 s30, {reps+1}\ns_cbranch_scc1 L_rep")
    a("s_waitcnt vmcnt(0)\ns_barrier\ns_memtime s[34:35]\ns_waitcnt lgkmcnt(0)")
    a("s_sub_u32 s34, s34, s32\nv_mov_b32 v3, s34\ns_lshl_b32 s3, s2, 2\nv_mov_b32 v4, s3")
    a("v_cmp_eq_u32 vcc, 0, v0\ns_and_saveexec_b64 s[36:37], vcc\ns_cbranch_execz L_end\nbuffer_store_dword v3, v4, s[12:15], 0 offen\ns_waitcnt vmcnt(0)")
    a("L_end:\ns_endpgm")
    return hdr + kernel_head(name) + a.text() + kernel_desc(name), bytes_per_pass*reps
if __name__ == "__main__":
    import json
    cfgs = []
    for mode in ["lds", "vgpr"]:
        for (seg, rs, ss, off) in [(1024,16384,1024,0),(256,3584,224,0),(224,3584,224,0),(128,3584,128,0),(128,3584,128,64),(128,3584,128,32),(64,3584,64,0),(64,3584,64,32),(64,2688,56,0),(32,3584,32,0),(16,896,16,0),(32,896,32,0)]:
            for nw, depth in [(4,8),(8,8),(8,3)]:
                rows = 448
                if seg == 1024: rows = 128
                if seg <= 64: rows = 512
                if seg == 128: rows = 448
                if seg in (16,): rows = 2048
                if seg in (32,) and rs == 896: rows = 2048
                try:
                    t, nb = gen(mode, seg, rs, ss, off, nw, depth, rows=rows)
                except AssertionError as e:
                    continue
                fn = f"mb_{mode}_{seg}_{rs}_{off}_{nw}_{depth}.s"
                open("out/"+fn, "w").write(t)
                cfgs.append((fn, nb))
    json.dump(cfgs, open("out/cfgs.json", "w"))
    print(len(cfgs))
```

```python
import json
from mb_bw import gen
cfgs = []
for rs in (3584, 2688, 896, 4096, 3584 + 128):
    for ss, ng in ((128, 4), (256, 4), (512, 4), (128, 1), (1024, 2)):
        if ss * ng > rs: continue
        t, nb = gen("lds", 128, rs, ss, 0, 4, 12, rows=448 if rs != 896 else 1792, ngrp=ng)
        fn = f"ch_{rs}_{ss}_{ng}.s"; open("out/" + fn, "w").write(t); cfgs.append((fn, nb))
json.dump(cfgs, open("out/cfgs_ch.json", "w"))
```
